```python
import torch

def _softmax(x, axis=-1):
    return torch.softmax(x, dim=axis)
def _gelu(x):
    return torch.nn.functional.gelu(x, approximate="tanh")
def _silu(x):
    return torch.nn.functional.silu(x)
def _sigmoid(x):
    return torch.sigmoid(x)
def _layernorm(x, axis=-1, eps=1e-5):
    m = x.mean(dim=axis, keepdim=True)
    v = x.var(dim=axis, keepdim=True, unbiased=False)
    return (x - m) / torch.sqrt(v + eps)
def _scatter_add(tgt, idx, src, axis=0):
    return tgt.clone().index_add_(axis, idx, src)
def _segment_sum(src, seg, n):
    out = torch.zeros((n,) + src.shape[1:], dtype=src.dtype)
    return out.index_add_(0, seg, src)
def _pad(x, pw):
    flat = tuple(v for pair in reversed(pw) for v in pair)
    return torch.nn.functional.pad(x, flat)

kernel_name = 'concat_heads__gqa_block_cached__gqa_block_cached__near_ridge'

def setup_inputs():

    _w = (lambda a: (lambda t: t.to(torch.bfloat16) if t.is_floating_point() else t)(torch.as_tensor(a)))
    def _A_setup():
        B, Sq, D = 16, 144, 640
        Hq, Hkv, Sk, Dh = 32, 32, 512, 128
        assert Hq % Hkv == 0, (Hq, Hkv)
        return {
            "x": _w((lambda *s: torch.randn(*s, dtype=torch.bfloat16) * 0.8)(B, Sq, D)),
            "k_cache": _w((lambda *s: torch.randn(*s, dtype=torch.bfloat16) * 0.8)(B, Hkv, Sk, Dh)),
            "v_cache": _w((lambda *s: torch.randn(*s, dtype=torch.bfloat16) * 0.05)(B, Hkv, Sk, Dh)),
            "wq": _w((lambda *s: torch.randn(*s, dtype=torch.bfloat16) * 0.8)(D, Hq * Dh) * (D ** -0.5)),
            "wo": _w((lambda *s: torch.randn(*s, dtype=torch.bfloat16) * 0.05)(Hq * Dh, D) * ((Hq * Dh) ** -0.5)),
        }
    _A_in = _A_setup()

    def _B_setup():
        B, Sq, D = 16, 144, 640
        Hq, Hkv, Sk, Dh = 32, 32, 512, 128
        assert Hq % Hkv == 0, (Hq, Hkv)
        return {
            "x": _w((lambda *s: torch.randn(*s, dtype=torch.bfloat16) * 0.8)(B, Sq, D)),
            "k_cache": _w((lambda *s: torch.randn(*s, dtype=torch.bfloat16) * 0.8)(B, Hkv, Sk, Dh)),
            "v_cache": _w((lambda *s: torch.randn(*s, dtype=torch.bfloat16) * 0.05)(B, Hkv, Sk, Dh)),
            "wq": _w((lambda *s: torch.randn(*s, dtype=torch.bfloat16) * 0.8)(D, Hq * Dh) * (D ** -0.5)),
            "wo": _w((lambda *s: torch.randn(*s, dtype=torch.bfloat16) * 0.05)(Hq * Dh, D) * ((Hq * Dh) ** -0.5)),
        }
    _B_in = _B_setup()

    return {
        "A_x": _A_in["x"],
        "A_k_cache": _A_in["k_cache"],
        "A_v_cache": _A_in["v_cache"],
        "A_wq": _A_in["wq"],
        "A_wo": _A_in["wo"],
        "B_x": _B_in["x"],
        "B_k_cache": _B_in["k_cache"],
        "B_v_cache": _B_in["v_cache"],
        "B_wq": _B_in["wq"],
        "B_wo": _B_in["wo"],
    }

def reference(A_x, A_k_cache, A_v_cache, A_wq, A_wo, B_x, B_k_cache, B_v_cache, B_wq, B_wo):
    def _A_ref(x, k_cache, v_cache, wq, wo):
        B, Sq, D = x.shape
        Hq, Dh = 32, 128
        Hkv = k_cache.shape[1]
        rep = Hq // Hkv
        q = (lambda x, *d: x.permute(*d))((x @ wq).reshape(B, Sq, Hq, Dh), 0, 2, 1, 3)
        k = (lambda x, n, axis: torch.repeat_interleave(x, n, dim=axis))(k_cache, rep, axis=1)
        v = (lambda x, n, axis: torch.repeat_interleave(x, n, dim=axis))(v_cache, rep, axis=1)
        scores = torch.einsum("bhqd,bhkd->bhqk", q, k) * (Dh ** -0.5)
        p = _softmax(scores, axis=-1)
        o = torch.einsum("bhqk,bhkd->bhqd", p, v)
        return (lambda x, *d: x.permute(*d))(o, 0, 2, 1, 3).reshape(B, Sq, Hq * Dh) @ wo

    def _B_ref(x, k_cache, v_cache, wq, wo):
        B, Sq, D = x.shape
        Hq, Dh = 32, 128
        Hkv = k_cache.shape[1]
        rep = Hq // Hkv
        q = (lambda x, *d: x.permute(*d))((x @ wq).reshape(B, Sq, Hq, Dh), 0, 2, 1, 3)
        k = (lambda x, n, axis: torch.repeat_interleave(x, n, dim=axis))(k_cache, rep, axis=1)
        v = (lambda x, n, axis: torch.repeat_interleave(x, n, dim=axis))(v_cache, rep, axis=1)
        scores = torch.einsum("bhqd,bhkd->bhqk", q, k) * (Dh ** -0.5)
        p = _softmax(scores, axis=-1)
        o = torch.einsum("bhqk,bhkd->bhqd", p, v)
        return (lambda x, *d: x.permute(*d))(o, 0, 2, 1, 3).reshape(B, Sq, Hq * Dh) @ wo

    a = _A_ref(A_x, A_k_cache, A_v_cache, A_wq, A_wo)
    b = _B_ref(B_x, B_k_cache, B_v_cache, B_wq, B_wo)
    return torch.concatenate([a, b], axis=-1)
```

```python
import sys, struct
import os
PROF = int(os.environ.get("PROF", "0"))
EXP = os.environ.get("EXP", "")
NAME = "concat_heads__gqa_block_cached__gqa_block_cached__near_ridge"
O_BYTES = 2*16*128*9216
WT_BYTES = 2*8*128*5120
C_SCALE = (128 ** -0.5) * 1.4426950408889634
def f2u(f): return struct.unpack('<I', struct.pack('<f', f))[0]

class Asm:
    def __init__(s):
        s.L = []; s.vm = []
        s.lab = 0
    def __call__(s, t): s.L.append("    " + t)
    def label(s, t): s.L.append(t + ":")
    def vmem(s, t, tag): s(t); s.vm.append(tag)
    def wait_vm(s, tags):
        last = -1
        for i, t in enumerate(s.vm):
            if t in tags: last = i
        if last < 0: return
        n = len(s.vm) - 1 - last
        assert n <= 63, n
        s("s_waitcnt vmcnt(%d)" % n)
    def newlab(s, p):
        s.lab += 1; return "L_%s_%d" % (p, s.lab)

def vr(b, n): return "v[%d:%d]" % (b, b+n-1)
def ar(b, n): return "a[%d:%d]" % (b, b+n-1)

def frag_pipe(a, jobs, bufs, LA):
    NB = len(bufs); issued = []
    def issue(i):
        r = jobs[i][0](bufs[i % NB])
        for x in r: a(x)
        issued.append(len(r))
    for i in range(min(LA, len(jobs))): issue(i)
    for i in range(len(jobs)):
        if i + LA < len(jobs): issue(i + LA)
        n = sum(issued[i+1:])
        a("s_waitcnt lgkmcnt(%d)" % n)
        for x in jobs[i][1](bufs[i % NB]): a(x)

def srd(a, d, lo, hi, nbytes):
    a("s_mov_b32 s%d, %s" % (d, lo)); a("s_and_b32 s%d, %s, 0xffff" % (d+1, hi))
    a("s_mov_b32 s%d, 0x%x" % (d+2, nbytes)); a("s_mov_b32 s%d, 0x20000" % (d+3))

def k1():
    a = Asm()
    ACC, AX, QF, QX, S, P = 0, 64, 96, 128, 144, 176
    XS = 96
    WOT = 72
    BUF = [192 + 4*i for i in range(6)]
    SX, PX = 216, 220
    KA, VA = 222, 230
    KX, VX, WX, DK, DV, DW, XO, XX, M, Lr, MX, LX = range(234, 246)
    T = list(range(246, 256))
    sX, sK, sV, sWQ, sWO, sO, sWT = 44, 48, 52, 56, 60, 64, 68
    QEX = 65536
    a("s_cmp_ge_u32 s2, 1024"); a("s_cbranch_scc1 L_k1_end")
    if PROF: a("s_memtime s[100:101]"); a("s_waitcnt lgkmcnt(0)"); a("s_mov_b32 s99, s100")
    a("s_load_dwordx16 s[16:31], s[0:1], 0"); a("s_load_dwordx8 s[32:39], s[0:1], 64")
    a("s_load_dwordx2 s[40:41], s[0:1], 96")
    a("v_lshrrev_b32 v%d, 6, v0" % T[0]); a("v_and_b32 v%d, 63, v0" % T[1])
    a("s_nop 0"); a("v_readfirstlane_b32 s3, v%d" % T[0])
    a("s_and_b32 s8, s2, 7"); a("s_lshr_b32 s9, s2, 3"); a("s_and_b32 s10, s9, 3")
    a("s_lshl_b32 s6, s8, 2"); a("s_add_u32 s6, s6, s10")
    a("s_lshr_b32 s9, s9, 2"); a("s_lshr_b32 s4, s9, 4"); a("s_and_b32 s5, s9, 15")
    a("s_lshl_b32 s7, s5, 5"); a("s_add_u32 s7, s7, s6"); a("s_lshl_b32 s7, s7, 17")
    a("s_lshl_b32 s9, s3, 10")
    a("s_mov_b32 s11, 0x%x" % f2u(C_SCALE)); a("s_mov_b32 s12, 0x%x" % f2u(8.0))
    a("s_lshl_b32 s13, s6, 8")
    l = T[1]
    a("v_lshrrev_b32 v%d, 4, v%d" % (T[2], l))
    a("v_and_b32 v%d, 15, v%d" % (T[3], l))
    g, t = T[2], T[3]
    a("s_lshl_b32 s10, s3, 2"); a("v_add_u32 v%d, s10, v%d" % (T[4], g))
    a("v_xor_b32 v%d, v%d, v%d" % (T[5], t, T[4])); a("v_lshlrev_b32 v%d, 4, v%d" % (T[5], T[5]))
    a("v_lshl_add_u32 v%d, v%d, 8, v%d" % (DK, T[4], T[5]))
    a("v_lshlrev_b32 v%d, 2, v%d" % (T[5], g)); a("v_xor_b32 v%d, v%d, v%d" % (T[5], t, T[5]))
    a("v_lshlrev_b32 v%d, 4, v%d" % (T[5], T[5]))
    a("v_lshl_add_u32 v%d, v%d, 8, v%d" % (DV, T[4], T[5]))
    a("v_lshl_add_u32 v%d, v%d, %d, v%d" % (DW, T[4], 8 if "W" in EXP else 13, T[5]))
    if "W" in EXP: a("s_mul_i32 s13, s6, 163840")
    a("s_mul_i32 s10, s5, 144"); a("s_lshl_b32 s14, s3, 5"); a("s_add_u32 s14, s14, s10")
    a("v_and_b32 v%d, 31, v%d" % (T[4], l)); a("v_add_u32 v%d, s14, v%d" % (T[5], T[4]))
    a("s_movk_i32 s15, 1280"); a("v_mul_lo_u32 v%d, v%d, s15" % (T[5], T[5]))
    a("v_lshrrev_b32 v%d, 5, v%d" % (T[6], l))
    a("v_lshl_add_u32 v%d, v%d, 4, v%d" % (XO, T[6], T[5]))
    a("s_add_u32 s10, s10, 128"); a("v_add_u32 v%d, s10, v%d" % (T[5], t))
    a("v_mul_lo_u32 v%d, v%d, s15" % (T[5], T[5])); a("v_lshl_add_u32 v%d, v%d, 4, v%d" % (XX, g, T[5]))
    a("s_waitcnt lgkmcnt(0)")
    a("s_cmp_eq_u32 s4, 0")
    for i, d in enumerate([16, 18, 20, 22, 24]):
        a("s_cselect_b32 s%d, s%d, s%d" % (d, d, d+10)); a("s_cselect_b32 s%d, s%d, s%d" % (d+1, d+1, d+11))
    srd(a, sX, "s16", "s17", 16*144*640*2); srd(a, sK, "s18", "s19", 1 << 26); srd(a, sV, "s20", "s21", 1 << 26)
    srd(a, sWQ, "s22", "s23", 640*4096*2); srd(a, sWO, "s24", "s25", 640*4096*2)
    srd(a, sO, "s40", "s41", O_BYTES)
    a("s_add_u32 s40, s40, 0x%x" % O_BYTES); a("s_addc_u32 s41, s41, 0")
    srd(a, sWT, "s40", "s41", WT_BYTES)

    def dma(tile):
        slot = tile % 4
        for i in range(4):
            a("s_add_u32 m0, s9, 0x%x" % (slot*16384 + i*4096))
            if tile < 10:
                a("s_add_u32 s10, s13, 0x%x" % ((64*tile + 16*i)*(256 if "W" in EXP else 8192)))
                a.vmem("buffer_load_dwordx4 v%d, s[%d:%d], s10 offen lds" % (DW, sWQ, sWQ+3), ("t", tile))
            else:
                j, isv = (tile-10)//2, (tile-10) % 2
                a("s_add_u32 s10, s7, 0x%x" % (j*16384 + i*4096))
                a.vmem("buffer_load_dwordx4 v%d, s[%d:%d], s10 offen lds" % ((DV, sV, sV+3) if isv else (DK, sK, sK+3)), ("t", tile))
    def xload(tile):
        if "X" in EXP and tile > 0: return
        b = XS + 24*(tile % 4)
        for s in range(4):
            a.vmem("buffer_load_dwordx4 %s, v%d, s[%d:%d], 0 offen offset:%d" % (vr(b+4*s, 4), XO, sX, sX+3, tile*128 + s*32), ("x", tile))
        for s in range(2):
            a.vmem("buffer_load_dwordx4 %s, v%d, s[%d:%d], 0 offen offset:%d" % (vr(b+16+4*s, 4), XX, sX, sX+3, tile*128 + s*64), ("x", tile))
    dma(0); xload(0); dma(1); xload(1); dma(2); xload(2)
    a("s_and_b32 s14, s5, 3"); a("s_lshl_b32 s15, s6, 2"); a("s_add_u32 s14, s14, s15")
    a("s_lshr_b32 s15, s5, 2")
    a("s_movk_i32 s16, 0x2800"); a("v_mul_lo_u32 v%d, v%d, s16" % (T[4], g))
    a("v_lshl_add_u32 v%d, v%d, 1, v%d" % (T[4], t, T[4]))
    a("s_mul_i32 s16, s14, 40960")
    a("s_mul_i32 s17, s15, 320"); a("s_add_u32 s16, s16, s17")
    a("s_add_u32 s20, s3, 4"); a("s_add_u32 s21, s3, 8"); a("s_add_u32 s22, s3, 6")
    a("s_cmp_lt_u32 s3, 2"); a("s_cselect_b32 s21, s21, s22"); a("s_mov_b32 s19, s3")
    for fi in range(3):
        a("s_lshl_b32 s17, s%d, 5" % (19+fi)); a("s_add_u32 s17, s17, s16"); a("s_add_u32 s18, s17, 5120")
        for j in range(8):
            a.vmem("buffer_load_ushort v%d, v%d, s[%d:%d], s%d offen offset:%d" % (WOT+8*fi+j, T[4], sWO, sWO+3, 17 + j//4, (j % 4)*1280), "wo")
        a("s_cmp_ge_u32 s%d, 5" % (19+fi)); a("s_cselect_b32 s17, 1, 0"); a("s_mul_i32 s18, s17, 5")
        a("s_sub_u32 s18, s%d, s18" % (19+fi))
        a("s_lshl_b32 s22, s15, 1"); a("s_add_u32 s17, s17, s22")
        a("s_lshl_b32 s22, s4, 3"); a("s_add_u32 s17, s17, s22"); a("s_lshl_b32 s17, s17, 7"); a("s_add_u32 s17, s17, s14")
        a("s_mul_i32 s17, s17, 5120"); a("s_lshl_b32 s18, s18, 10"); a("s_add_u32 s%d, s17, s18" % (23+fi))
    hh = T[6]
    a("v_and_b32 v%d, 31, v%d" % (T[4], l))
    a("v_and_b32 v%d, 19, v%d" % (T[5], T[4])); a("v_and_b32 v%d, 4, v%d" % (T[7], T[4])); a("v_lshl_add_u32 v%d, v%d, 1, v%d" % (T[5], T[7], T[5]))
    a("v_and_b32 v%d, 8, v%d" % (T[7], T[4])); a("v_lshrrev_b32 v%d, 1, v%d" % (T[7], T[7])); a("v_add_u32 v%d, v%d, v%d" % (T[5], T[5], T[7]))
    a("v_and_b32 v%d, 15, v%d" % (T[7], T[5])); a("v_xor_b32 v%d, v%d, v%d" % (T[7], T[7], hh)); a("v_lshlrev_b32 v%d, 4, v%d" % (T[7], T[7]))
    a("v_lshl_add_u32 v%d, v%d, 8, v%d" % (KA, T[5], T[7]))
    for s in range(1, 8): a("v_xor_b32 v%d, %d, v%d" % (KA+s, 32*s, KA))
    r_, c_ = T[4], T[5]
    a("v_lshrrev_b32 v%d, 2, v%d" % (r_, t)); a("v_and_b32 v%d, 3, v%d" % (c_, t))
    a("v_and_b32 v%d, 1, v%d" % (T[7], g)); a("v_and_b32 v%d, 1, v%d" % (T[8], c_)); a("v_lshl_add_u32 v%d, v%d, 1, v%d" % (T[7], T[7], T[8]))
    a("v_lshl_add_u32 v%d, v%d, 2, v%d" % (T[7], r_, T[7]))
    a("v_lshlrev_b32 v%d, 4, v%d" % (T[7], T[7])); a("v_lshrrev_b32 v%d, 1, v%d" % (T[8], c_)); a("v_lshl_add_u32 v%d, v%d, 3, v%d" % (T[7], T[8], T[7]))
    a("v_lshl_add_u32 v%d, v%d, 3, v%d" % (T[8], hh, r_)); a("v_lshl_add_u32 v%d, v%d, 8, v%d" % (VA, T[8], T[7]))
    for tt in range(1, 4): a("v_xor_b32 v%d, %d, v%d" % (VA+tt, 64*tt, VA))
    a("s_lshl_b32 s10, s3, 4"); a("v_add_u32 v%d, s10, v%d" % (T[7], t)); a("v_xor_b32 v%d, v%d, v%d" % (T[8], g, t))
    a("v_lshlrev_b32 v%d, 4, v%d" % (T[8], T[8])); a("v_lshl_add_u32 v%d, v%d, 8, v%d" % (KX, T[7], T[8]))
    a("v_lshl_add_u32 v%d, v%d, 2, v%d" % (T[7], g, r_)); a("v_add_u32 v%d, s10, v%d" % (T[7], T[7]))
    a("v_lshl_add_u32 v%d, v%d, 2, v%d" % (T[8], r_, c_)); a("v_lshlrev_b32 v%d, 4, v%d" % (T[8], T[8]))
    a("v_lshl_add_u32 v%d, v%d, 8, v%d" % (VX, T[7], T[8]))
    a("s_lshl_b32 s10, s3, 6"); a("v_xor_b32 v%d, s10, v%d" % (T[8], T[8]))
    a("v_lshl_add_u32 v%d, v%d, 3, v%d" % (T[7], g, r_)); a("v_lshl_add_u32 v%d, v%d, 8, v%d" % (WX, T[7], T[8]))
    LN16 = T[9]
    a("v_lshlrev_b32 v%d, 4, v%d" % (LN16, l))

    def trjob(T_, ks, slot, mf):
        def rd(b): return ["ds_read_b64_tr_b16 %s, v%d offset:%d" % (vr(b+2*u, 2), VA+T_, slot*16384 + ks*4096 + u*1024) for u in range(2)]
        return (rd, mf)

    for step in range(26):
        slot = step % 4
        a("; ---- step %d" % step)
        a.wait_vm({("t", step), ("x", step)} | ({"wo"} if step == 3 else set()))
        a("s_barrier")
        if PROF: a("s_memtime s[100:101]"); a("s_waitcnt lgkmcnt(0)"); a("s_mov_b32 s%d, s100" % (72+step))
        if step + 3 < 26: dma(step + 3)
        if step + 3 < 10: xload(step + 3)
        if step == 3:
            for fi in range(3):
                for k in range(4): a("v_lshl_or_b32 v%d, v%d, 16, v%d" % (WOT+8*fi+k, WOT+8*fi+2*k+1, WOT+8*fi+2*k))
                a.vmem("buffer_store_dwordx4 %s, v%d, s[%d:%d], s%d offen" % (vr(WOT+8*fi, 4), LN16, sWT, sWT+3, 23+fi), "st")
        if step < 10:
            xb = XS + 24*slot
            jobs = []
            for ks in range(4):
                for T_ in range(4):
                    c = "0" if (step == 0 and ks == 0) else vr(ACC+16*T_, 16)
                    jobs.append(trjob(T_, ks, slot, lambda b, T_=T_, ks=ks, c=c: ["v_mfma_f32_32x32x16_bf16 %s, %s, %s, %s" % (vr(ACC+16*T_, 16), vr(b, 4), vr(xb+4*ks, 4), c)]))
                if ks % 2 == 1:
                    s2 = ks//2
                    for e in range(2):
                        c = "0" if (step == 0 and s2 == 0) else vr(AX+4*e, 4)
                        jobs.append((lambda b, e=e, s2=s2: ["ds_read_b64_tr_b16 %s, v%d offset:%d" % (vr(b+2*u, 2), WX, slot*16384 + s2*8192 + u*1024 + 8*e) for u in range(2)],
                                     lambda b, e=e, s2=s2, c=c: ["v_mfma_f32_16x16x32_bf16 %s, %s, %s, %s" % (vr(AX+4*e, 4), vr(b, 4), vr(xb+16+4*s2, 4), c)]))
            frag_pipe(a, jobs, BUF, 4)
            if step == 9:
                a("s_nop 7"); a("s_nop 7")
                for i in range(4): a("v_cvt_pk_bf16_f32 v%d, v%d, v%d" % (SX+i, AX+2*i, AX+2*i+1))
                a("s_lshl_b32 s10, s3, 10"); a("s_add_u32 s10, s10, 0x%x" % QEX); a("v_add_u32 v%d, s10, v%d" % (T[0], LN16))
                a("ds_write_b128 v%d, %s" % (T[0], vr(SX, 4)))
                for i in range(32): a("v_cvt_pk_bf16_f32 v%d, v%d, v%d" % (QF+i, ACC+2*i, ACC+2*i+1))
                a("s_waitcnt lgkmcnt(0)")
        elif step % 2 == 0:
            j = (step - 10)//2
            if j == 0:
                a("v_add_u32 v%d, 0x%x, v%d" % (T[0], QEX, LN16))
                for s in range(4): a("ds_read_b128 %s, v%d offset:%d" % (vr(QX+4*s, 4), T[0], s*1024))
            for s in range(1, 4): a("v_xor_b32 v%d, %d, v%d" % (T[s], 64*s, KX))
            jobs = []
            for kt in range(2):
                for s in range(8):
                    c = "0" if s == 0 else vr(S+16*kt, 16)
                    jobs.append((lambda b, kt=kt, s=s: ["ds_read_b128 %s, v%d offset:%d" % (vr(b, 4), KA+s, slot*16384 + kt*8192)],
                                 lambda b, kt=kt, s=s, c=c: ["v_mfma_f32_32x32x16_bf16 %s, %s, %s, %s" % (vr(S+16*kt, 16), vr(b, 4), vr(QF+4*s, 4), c)]))
            for s in range(4):
                c = "0" if s == 0 else vr(SX, 4)
                jobs.append((lambda b, s=s: ["ds_read_b128 %s, v%d offset:%d" % (vr(b, 4), KX if s == 0 else T[s], slot*16384)],
                             lambda b, s=s, c=c: ["v_mfma_f32_16x16x32_bf16 %s, %s, %s, %s" % (vr(SX, 4), vr(b, 4), vr(QX+4*s, 4), c)]))
            frag_pipe(a, jobs, BUF, 4)
            a("s_nop 3")
            a("v_max3_f32 v%d, v%d, v%d, v%d" % (T[0], S, S+1, S+2)); a("v_max3_f32 v%d, v%d, v%d, v%d" % (T[1], S+16, S+17, S+18))
            for i in range(3, 15, 2):
                a("v_max3_f32 v%d, v%d, v%d, v%d" % (T[0], T[0], S+i, S+i+1)); a("v_max3_f32 v%d, v%d, v%d, v%d" % (T[1], T[1], S+16+i, S+17+i))
            a("v_max3_f32 v%d, v%d, v%d, v%d" % (T[0], T[0], S+15, S+31)); a("v_max_f32 v%d, v%d, v%d" % (T[0], T[0], T[1]))
            a("v_max3_f32 v%d, v%d, v%d, v%d" % (T[2], SX, SX+1, SX+2)); a("v_max_f32 v%d, v%d, v%d" % (T[2], T[2], SX+3))
            a("v_mov_b32 v%d, v%d" % (T[1], T[0])); a("v_mov_b32 v%d, v%d" % (T[3], T[2])); a("s_nop 1")
            a("v_permlane32_swap_b32 v%d, v%d" % (T[0], T[1])); a("v_permlane32_swap_b32 v%d, v%d" % (T[2], T[3])); a("s_nop 1")
            a("v_max_f32 v%d, v%d, v%d" % (T[0], T[0], T[1])); a("v_max_f32 v%d, v%d, v%d" % (T[2], T[2], T[3]))
            a("v_mov_b32 v%d, v%d" % (T[3], T[2])); a("v_mul_f32 v%d, s11, v%d" % (T[0], T[0])); a("s_nop 1")
            a("v_permlane16_swap_b32 v%d, v%d" % (T[2], T[3])); a("s_nop 1")
            a("v_max_f32 v%d, v%d, v%d" % (T[2], T[2], T[3])); a("v_mul_f32 v%d, s11, v%d" % (T[2], T[2]))
            if j == 0:
                a("v_mov_b32 v%d, v%d" % (M, T[0])); a("v_mov_b32 v%d, v%d" % (MX, T[2]))
                a("v_mov_b32 v%d, 0" % Lr); a("v_mov_b32 v%d, 0" % LX)
            else:
                for (mm, ll, tn, acc, n) in ((M, Lr, T[0], ACC, 64), (MX, LX, T[2], AX, 32)):
                    lb = a.newlab("nors")
                    a("v_add_f32 v%d, s12, v%d" % (T[4], mm)); a("v_cmp_gt_f32 vcc, v%d, v%d" % (tn, T[4])); a("s_nop 1")
                    a("s_cbranch_vccz %s" % lb)
                    a("v_max_f32 v%d, v%d, v%d" % (T[4], mm, tn)); a("v_sub_f32 v%d, v%d, v%d" % (T[5], mm, T[4]))
                    a("v_exp_f32 v%d, v%d" % (T[5], T[5])); a("v_mov_b32 v%d, v%d" % (mm, T[4]))
                    a("v_mul_f32 v%d, v%d, v%d" % (ll, ll, T[5]))
                    for i in range(n): a("v_mul_f32 v%d, v%d, v%d" % (acc+i, acc+i, T[5]))
                    a.label(lb)
            for i in range(32): a("v_fma_f32 v%d, v%d, s11, -v%d" % (S+i, S+i, M))
            for i in range(4): a("v_fma_f32 v%d, v%d, s11, -v%d" % (SX+i, SX+i, MX))
            for i in range(32): a("v_exp_f32 v%d, v%d" % (S+i, S+i))
            for i in range(4): a("v_exp_f32 v%d, v%d" % (SX+i, SX+i))
            a("v_add_f32 v%d, v%d, v%d" % (T[0], S, S+1)); a("v_add_f32 v%d, v%d, v%d" % (T[1], S+2, S+3))
            for i in range(4, 32, 2):
                a("v_add_f32 v%d, v%d, v%d" % (T[0], T[0], S+i)); a("v_add_f32 v%d, v%d, v%d" % (T[1], T[1], S+i+1))
            for i in range(16): a("v_cvt_pk_bf16_f32 v%d, v%d, v%d" % (P+i, S+2*i, S+2*i+1))
            a("v_add_f32 v%d, v%d, v%d" % (T[2], SX, SX+1)); a("v_add_f32 v%d, v%d, v%d" % (T[3], SX+2, SX+3))
            a("v_cvt_pk_bf16_f32 v%d, v%d, v%d" % (PX, SX, SX+1)); a("v_cvt_pk_bf16_f32 v%d, v%d, v%d" % (PX+1, SX+2, SX+3))
            a("v_add_f32 v%d, v%d, v%d" % (T[0], T[0], T[1])); a("v_add_f32 v%d, v%d, v%d" % (T[2], T[2], T[3]))
            a("v_add_f32 v%d, v%d, v%d" % (Lr, Lr, T[0])); a("v_add_f32 v%d, v%d, v%d" % (LX, LX, T[2]))
        else:
            j = (step - 11)//2
            for s in range(1, 4): a("v_xor_b32 v%d, %d, v%d" % (T[s], 64*s, VX))
            jobs = []
            for ks in range(4):
                for T_ in range(4):
                    c = "0" if (j == 0 and ks == 0) else vr(ACC+16*T_, 16)
                    jobs.append(trjob(T_, ks, slot, lambda b, T_=T_, ks=ks, c=c: ["v_mfma_f32_32x32x16_bf16 %s, %s, %s, %s" % (vr(ACC+16*T_, 16), vr(b, 4), vr(P+4*ks, 4), c)]))
                T_ = ks
                def rdx(b, T_=T_): return ["ds_read_b64_tr_b16 %s, v%d offset:%d" % (vr(b+2*e, 2), VX if T_ == 0 else T[T_], slot*16384 + 8*e) for e in range(2)]
                def mfx(b, T_=T_): return ["v_mfma_f32_16x16x16_bf16 %s, %s, %s, %s" % (vr(AX+8*T_+4*e, 4), vr(b+2*e, 2), vr(PX, 2), "0" if j == 0 else vr(AX+8*T_+4*e, 4)) for e in range(2)]
                jobs.append((rdx, mfx))
            frag_pipe(a, jobs, BUF, 4)
    a("; ---- epilogue")
    a("v_mov_b32 v%d, v%d" % (T[0], Lr)); a("v_mov_b32 v%d, v%d" % (T[1], LX)); a("s_nop 1")
    a("v_permlane32_swap_b32 v%d, v%d" % (Lr, T[0])); a("v_permlane32_swap_b32 v%d, v%d" % (LX, T[1])); a("s_nop 1")
    a("v_add_f32 v%d, v%d, v%d" % (Lr, Lr, T[0])); a("v_add_f32 v%d, v%d, v%d" % (LX, LX, T[1]))
    a("v_mov_b32 v%d, v%d" % (T[1], LX)); a("v_rcp_f32 v%d, v%d" % (Lr, Lr)); a("s_nop 1")
    a("v_permlane16_swap_b32 v%d, v%d" % (LX, T[1])); a("s_nop 1")
    a("v_add_f32 v%d, v%d, v%d" % (MX+1, LX, T[1]))
    assert MX % 2 == 0 and LX == MX + 1
    a("s_lshl_b32 s10, s3, 13"); a("s_add_u32 s10, s10, 32768"); a("v_add_u32 v%d, s10, v%d" % (T[0], LN16))
    a("s_nop 7"); a("s_nop 7")
    for i in range(8): a("ds_write_b128 v%d, %s offset:%d" % (T[0], vr(AX+4*i, 4), i*1024))
    a("v_lshrrev_b32 v%d, 1, v%d" % (T[2], LN16)); a("v_add_u32 v%d, 0x%x, v%d" % (T[2], QEX, T[2]))
    a("s_lshl_b32 s10, s3, 9"); a("v_add_u32 v%d, s10, v%d" % (T[1], T[2]))
    a("ds_write_b64 v%d, %s" % (T[1], vr(MX, 2)))
    a("s_lshl_b32 s14, s4, 4"); a("s_add_u32 s14, s14, s5"); a("s_lshl_b32 s14, s14, 5"); a("s_add_u32 s14, s14, s6")
    a("s_mul_i32 s14, s14, 36864")
    a("s_lshl_b32 s15, s3, 11"); a("s_add_u32 s15, s15, s14")
    a("v_lshrrev_b32 v%d, 4, v%d" % (T[3], LN16))
    a("v_and_b32 v%d, 15, v%d" % (T[4], T[3])); a("v_lshrrev_b32 v%d, 5, v%d" % (T[5], T[3])); a("v_lshl_add_u32 v%d, v%d, 4, v%d" % (T[4], T[5], T[4]))
    a("v_lshlrev_b32 v%d, 4, v%d" % (T[4], T[4])); a("v_bfe_u32 v%d, v%d, 4, 1" % (T[5], T[3])); a("v_lshl_add_u32 v%d, v%d, 10, v%d" % (T[4], T[5], T[4]))
    for i in range(64): a("v_mul_f32 v%d, v%d, v%d" % (ACC+i, ACC+i, Lr))
    for i in range(32): a("v_cvt_pk_bf16_f32 v%d, v%d, v%d" % (S+i, ACC+2*i, ACC+2*i+1))
    for T_ in range(4):
        if T_: a("s_add_u32 s15, s15, 9216")
        for pc in range(2):
            a.vmem("buffer_store_dwordx4 %s, v%d, s[%d:%d], s15 offen offset:%d" % (vr(S+8*T_+4*pc, 4), T[4], sO, sO+3, pc*512), "st")
    a("s_waitcnt lgkmcnt(0)"); a("s_barrier")
    a("s_lshl_b32 s10, s3, 11"); a("s_add_u32 s10, s10, 32768"); a("v_add_u32 v%d, s10, v%d" % (T[0], LN16))
    for p in range(4):
        a("ds_read_b64 %s, v%d offset:%d" % (vr(BUF[0]+2*p, 2), T[2], p*512))
        for e in range(2): a("ds_read_b128 %s, v%d offset:%d" % (vr(AX+8*p+4*e, 4), T[0], p*8192 + e*1024))
    a("s_waitcnt lgkmcnt(0)")
    B0 = BUF[0]
    a("v_max3_f32 v%d, v%d, v%d, v%d" % (T[1], B0, B0+2, B0+4)); a("v_max_f32 v%d, v%d, v%d" % (T[1], T[1], B0+6))
    for p in range(4): a("v_sub_f32 v%d, v%d, v%d" % (B0+2*p, B0+2*p, T[1]))
    for p in range(4): a("v_exp_f32 v%d, v%d" % (B0+2*p, B0+2*p))
    a("s_nop 0")
    a("v_mul_f32 v%d, v%d, v%d" % (T[1], B0, B0+1))
    for p in range(1, 4): a("v_fmac_f32 v%d, v%d, v%d" % (T[1], B0+2*p, B0+2*p+1))
    a("v_rcp_f32 v%d, v%d" % (T[1], T[1])); a("s_nop 0")
    for p in range(4): a("v_mul_f32 v%d, v%d, v%d" % (B0+2*p, B0+2*p, T[1]))
    for i in range(8):
        a("v_mul_f32 v%d, v%d, v%d" % (AX+i, AX+i, B0))
        for p in range(1, 4): a("v_fmac_f32 v%d, v%d, v%d" % (AX+i, AX+8*p+i, B0+2*p))
    for i in range(4): a("v_cvt_pk_bf16_f32 v%d, v%d, v%d" % (P+i, AX+2*i, AX+2*i+1))
    a("s_mul_i32 s15, s3, 9216"); a("s_add_u32 s15, s15, s14"); a("s_add_u32 s15, s15, 8192")
    a.vmem("buffer_store_dwordx4 %s, v%d, s[%d:%d], s15 offen" % (vr(P, 4), LN16, sO, sO+3), "st")
    if PROF:
        a("s_memtime s[100:101]"); a("s_waitcnt lgkmcnt(0)"); a("s_mov_b32 s98, s100")
        for i in range(28): a("v_writelane_b32 v0, s%d, %d" % (72+i, i))
        a("s_mov_b32 s70, 0x8000000"); a("s_lshl_b32 s10, s2, 10"); a("s_lshl_b32 s11, s3, 8"); a("s_add_u32 s10, s10, s11"); a("s_add_u32 s10, s10, 0x2000000")
        a("v_lshrrev_b32 v1, 2, v%d" % LN16)
        a("buffer_store_dword v0, v1, s[68:71], s10 offen")
    a.label("L_k1_end")
    a("s_endpgm")
    return a.L

def k2():
    a = Asm()
    sO, sWT, sOUT = 44, 48, 52
    NST = 4
    a("s_cmp_ge_u32 s2, 256"); a("s_cbranch_scc1 L_k2_end")
    a("s_load_dwordx2 s[36:37], s[0:1], 80"); a("s_load_dwordx2 s[40:41], s[0:1], 96")
    a("v_lshrrev_b32 v1, 6, v0"); a("v_and_b32 v2, 63, v0"); a("s_nop 0"); a("v_readfirstlane_b32 s3, v1")
    a("s_and_b32 s8, s2, 7"); a("s_lshr_b32 s9, s2, 3")
    a("s_lshr_b32 s4, s8, 2"); a("s_and_b32 s5, s8, 3"); a("s_lshl_b32 s5, s5, 2"); a("s_lshr_b32 s10, s9, 3"); a("s_add_u32 s5, s5, s10")
    a("s_and_b32 s6, s9, 7")
    a("v_lshlrev_b32 v3, 4, v2")
    a("s_lshl_b32 s10, s4, 4"); a("s_add_u32 s10, s10, s5"); a("s_lshl_b32 s10, s10, 2"); a("s_add_u32 s10, s10, s3"); a("s_mul_i32 s10, s10, %d" % (32*9216))
    a("v_add_u32 v4, s10, v3")
    a("s_lshl_b32 s10, s4, 3"); a("s_add_u32 s10, s10, s6"); a("s_lshl_b32 s10, s10, 2"); a("s_add_u32 s10, s10, s3"); a("s_mul_i32 s10, s10, %d" % (32*5120))
    a("v_add_u32 v5, s10, v3")
    a("s_waitcnt lgkmcnt(0)")
    srd(a, sO, "s40", "s41", O_BYTES)
    a("s_add_u32 s40, s40, 0x%x" % O_BYTES); a("s_addc_u32 s41, s41, 0")
    srd(a, sWT, "s40", "s41", WT_BYTES)
    srd(a, sOUT, "s36", "s37", 16*144*1280*2)
    def load(ks):
        b = 8 + 56*(ks % NST)
        for grp in range(2):
            a("s_mov_b32 s%d, 0x%x" % (16+grp, ks*5120 + grp*4096))
        for grp in range(3):
            a("s_mov_b32 s%d, 0x%x" % (18+grp, ks*9216 + grp*4096))
        for i in range(5):
            a.vmem("buffer_load_dwordx4 %s, v5, s[%d:%d], s%d offen offset:%d" % (vr(b+4*i, 4), sWT, sWT+3, 16+i//4, (i % 4)*1024), ks)
        for i in range(9):
            a.vmem("buffer_load_dwordx4 %s, v4, s[%d:%d], s%d offen offset:%d" % (vr(b+20+4*i, 4), sO, sO+3, 18+i//4, (i % 4)*1024), ks)
    for ks in range(NST-1): load(ks)
    for ks in range(32):
        if ks + NST - 1 < 32: load(ks + NST - 1)
        a.wait_vm({ks})
        b = 8 + 56*(ks % NST)
        for mt in range(9):
            for nt in range(5):
                i = nt*9 + mt
                a("v_mfma_f32_16x16x32_bf16 %s, %s, %s, %s" % (ar(4*i, 4), vr(b+4*nt, 4), vr(b+20+4*mt, 4), "0" if ks == 0 else ar(4*i, 4)))
    a("s_mul_i32 s10, s3, 24576"); a("v_add_u32 v4, s10, v3")
    a("s_mul_i32 s10, s3, 6144"); a("v_add_u32 v5, s10, v3"); a("v_add_u32 v6, 49152, v5")
    a("s_mul_i32 s10, s5, 144"); a("v_and_b32 v7, 15, v2"); a("v_add_u32 v7, s10, v7"); a("s_movk_i32 s11, 2560"); a("v_mul_lo_u32 v7, v7, s11")
    a("v_lshrrev_b32 v1, 4, v2"); a("v_lshl_add_u32 v7, v1, 3, v7")
    a("s_mul_i32 s10, s4, 1280"); a("s_mul_i32 s11, s6, 160"); a("s_add_u32 s10, s10, s11"); a("v_add_u32 v7, s10, v7")
    a("s_mul_i32 s12, s3, 6")
    a("s_nop 7")
    for ph in range(2):
        tiles = range(24) if ph == 0 else range(24, 45)
        if ph: a("s_barrier")
        for i in tiles: a("ds_write_b128 v4, %s offset:%d" % (ar(4*i, 4), (i % 24)*1024))
        a("s_waitcnt lgkmcnt(0)"); a("s_barrier")
        for k in range(6):
            for p in range(4):
                a("ds_read_b128 %s, v%d offset:%d" % (vr(8+16*k+4*p, 4), 5 if p < 2 else 6, (p % 2)*24576 + k*1024))
            if k % 3 == 2: a("s_waitcnt lgkmcnt(0)")
        for k in range(6):
            b = 8+16*k
            for i in range(4):
                a("v_add_f32 v%d, v%d, v%d" % (b+i, b+i, b+4+i)); a("v_add_f32 v%d, v%d, v%d" % (b+8+i, b+8+i, b+12+i))
            for i in range(4): a("v_add_f32 v%d, v%d, v%d" % (b+i, b+i, b+8+i))
            a("v_cvt_pk_bf16_f32 v%d, v%d, v%d" % (b+4, b, b+1)); a("v_cvt_pk_bf16_f32 v%d, v%d, v%d" % (b+5, b+2, b+3))
            a("s_add_u32 s13, s12, %d" % (24*ph + k))
            a("s_mul_i32 s14, s13, 57"); a("s_lshr_b32 s14, s14, 9")
            a("s_mul_i32 s15, s14, 9"); a("s_sub_u32 s15, s13, s15")
            a("s_mul_i32 s15, s15, 40960"); a("s_lshl_b32 s14, s14, 5"); a("s_add_u32 s14, s14, s15")
            a("s_cmp_lt_u32 s13, 45"); a("s_cselect_b32 s14, s14, 0x40000000")
            a("buffer_store_dwordx2 %s, v7, s[%d:%d], s14 offen" % (vr(b+4, 2), sOUT, sOUT+3))
    a.label("L_k2_end")
    a("s_endpgm")
    return a.L

def desc(name, nv, acc, ns=102):
    return """.p2align 6
.amdhsa_kernel %s
  .amdhsa_next_free_vgpr %d
  .amdhsa_next_free_sgpr %d
  .amdhsa_accum_offset %d
  .amdhsa_group_segment_fixed_size 0
  .amdhsa_kernarg_size 104
  .amdhsa_user_sgpr_count 2
  .amdhsa_user_sgpr_kernarg_segment_ptr 1
  .amdhsa_system_sgpr_workgroup_id_x 1
.end_amdhsa_kernel
""" % (name, nv, ns, acc)

def main(out):
    K1 = NAME + "_kernel"; K2 = "oproj_kernel"
    o = []
    o.append("; @launch kernel=%s grid=(1024,1,1) block=(256,1,1) lds=69632" % K1)
    o.append("; @launch kernel=%s grid=(256,1,1) block=(256,1,1) lds=98304" % K2)
    o.append('.amdgcn_target "amdgcn-amd-amdhsa--gfx950"'); o.append(".text")
    for nm, body in ((K1, k1()), (K2, k2())):
        o.append(".globl %s" % nm); o.append(".p2align 8"); o.append(".type %s,@function" % nm); o.append(nm + ":")
        o += body
    o.append('.section .rodata,"a"')
    o.append(desc(K1, 256, 256, 102 if PROF else 80)); o.append(desc(K2, 436, 256, 80))
    open(out, "w").write("\n".join(o) + "\n")

if __name__ == "__main__":
    main(sys.argv[1] if len(sys.argv) > 1 else "cdna_kernels/%s.s" % NAME)
```

```python
import sys, struct
import os
PROF = int(os.environ.get("PROF", "0"))
EXP = os.environ.get("EXP", "")
NAME = "concat_heads__gqa_block_cached__gqa_block_cached__near_ridge"
O_BYTES = 2*16*128*9216
WT_BYTES = 2*8*128*5120
C_SCALE = (128 ** -0.5) * 1.4426950408889634
def f2u(f): return struct.unpack('<I', struct.pack('<f', f))[0]

class Asm:
    def __init__(s):
        s.L = []; s.vm = []
        s.lab = 0
    def __call__(s, t): s.L.append("    " + t)
    def label(s, t): s.L.append(t + ":")
    def vmem(s, t, tag): s(t); s.vm.append(tag)
    def wait_vm(s, tags):
        last = -1
        for i, t in enumerate(s.vm):
            if t in tags: last = i
        if last < 0: return
        n = len(s.vm) - 1 - last
        assert n <= 63, n
        s("s_waitcnt vmcnt(%d)" % n)
    def newlab(s, p):
        s.lab += 1; return "L_%s_%d" % (p, s.lab)

def vr(b, n): return "v[%d:%d]" % (b, b+n-1)
def ar(b, n): return "a[%d:%d]" % (b, b+n-1)

def frag_pipe(a, jobs, bufs, LA):
    NB = len(bufs); issued = []
    def issue(i):
        r = jobs[i][0](bufs[i % NB])
        for x in r: a(x)
        issued.append(len(r))
    for i in range(min(LA, len(jobs))): issue(i)
    for i in range(len(jobs)):
        if i + LA < len(jobs): issue(i + LA)
        n = sum(issued[i+1:])
        a("s_waitcnt lgkmcnt(%d)" % n)
        for x in jobs[i][1](bufs[i % NB]): a(x)

def srd(a, d, lo, hi, nbytes):
    a("s_mov_b32 s%d, %s" % (d, lo)); a("s_and_b32 s%d, %s, 0xffff" % (d+1, hi))
    a("s_mov_b32 s%d, 0x%x" % (d+2, nbytes)); a("s_mov_b32 s%d, 0x20000" % (d+3))

Q_OFF = O_BYTES + WT_BYTES
Q_BYTES = 1024*36864
def k0():
    a = Asm()
    ACC, BF, AF = 0, 144, 180
    DW, DX, DX8, WA, XA, LN16, QO = range(196, 203)
    T = list(range(204, 214))
    sX, sWQ, sQ = 44, 48, 52
    XB = 49152
    a("s_cmp_ge_u32 s2, 512"); a("s_cbranch_scc1 L_k0_end")
    a("s_load_dwordx16 s[16:31], s[0:1], 0"); a("s_load_dwordx8 s[32:39], s[0:1], 64")
    a("s_load_dwordx2 s[40:41], s[0:1], 96")
    a("v_lshrrev_b32 v%d, 6, v0" % T[0]); a("v_and_b32 v%d, 63, v0" % T[1])
    a("s_nop 0"); a("v_readfirstlane_b32 s3, v%d" % T[0])
    a("s_and_b32 s8, s2, 7"); a("s_lshr_b32 s9, s2, 3")
    a("s_and_b32 s6, s8, 3"); a("s_lshl_b32 s6, s6, 2"); a("s_and_b32 s10, s9, 3"); a("s_add_u32 s6, s6, s10")
    a("s_lshr_b32 s9, s9, 2")
    a("s_lshr_b32 s4, s9, 3")
    a("s_and_b32 s5, s9, 7"); a("s_lshr_b32 s10, s8, 2"); a("s_lshl_b32 s10, s10, 3"); a("s_add_u32 s5, s5, s10")
    a("s_lshl_b32 s9, s3, 10"); a("s_lshl_b32 s13, s6, 9")
    l = T[1]; g, t = T[2], T[3]
    a("v_lshrrev_b32 v%d, 4, v%d" % (g, l)); a("v_and_b32 v%d, 15, v%d" % (t, l)); a("v_lshlrev_b32 v%d, 4, v%d" % (LN16, l))
    a("s_lshl_b32 s10, s3, 1"); a("v_lshrrev_b32 v%d, 5, v%d" % (T[4], l)); a("v_add_u32 v%d, s10, v%d" % (T[4], T[4]))
    a("v_and_b32 v%d, 3, v%d" % (T[5], T[4])); a("v_lshlrev_b32 v%d, 2, v%d" % (T[5], T[5])); a("v_and_b32 v%d, 31, v%d" % (T[6], l))
    a("v_xor_b32 v%d, v%d, v%d" % (T[5], T[5], T[6])); a("v_lshlrev_b32 v%d, 4, v%d" % (T[5], T[5])); a("v_lshl_add_u32 v%d, v%d, 13, v%d" % (DW, T[4], T[5]))
    a("v_sub_u32 v%d, 4, v%d" % (T[4], g)); a("v_xor_b32 v%d, v%d, v%d" % (T[4], T[4], l)); a("v_and_b32 v%d, 3, v%d" % (T[4], T[4]))
    a("s_mul_i32 s10, s5, 144"); a("s_lshl_b32 s11, s3, 4"); a("s_add_u32 s11, s11, s10")
    a("v_lshrrev_b32 v%d, 2, v%d" % (T[5], l)); a("v_add_u32 v%d, s11, v%d" % (T[6], T[5])); a("s_movk_i32 s15, 1280")
    a("v_mul_lo_u32 v%d, v%d, s15" % (T[6], T[6])); a("v_lshl_add_u32 v%d, v%d, 4, v%d" % (DX, T[4], T[6]))
    a("s_sub_u32 s12, 4, s3"); a("v_xor_b32 v%d, s12, v%d" % (T[4], l)); a("v_and_b32 v%d, 3, v%d" % (T[4], T[4]))
    a("s_lshl_b32 s11, s3, 2"); a("s_add_u32 s11, s11, s10"); a("s_add_u32 s11, s11, 128")
    a("v_and_b32 v%d, 3, v%d" % (T[5], T[5])); a("v_add_u32 v%d, s11, v%d" % (T[6], T[5]))
    a("v_mul_lo_u32 v%d, v%d, s15" % (T[6], T[6])); a("v_lshl_add_u32 v%d, v%d, 4, v%d" % (DX8, T[4], T[6]))
    a("v_lshrrev_b32 v%d, 2, v%d" % (T[4], t)); a("v_sub_u32 v%d, 4, v%d" % (T[5], T[4])); a("v_xor_b32 v%d, v%d, v%d" % (T[5], T[5], g))
    a("v_and_b32 v%d, 3, v%d" % (T[5], T[5])); a("v_lshlrev_b32 v%d, 4, v%d" % (T[5], T[5])); a("v_lshl_add_u32 v%d, v%d, 6, v%d" % (XA, t, T[5]))
    a("v_add_u32 v%d, 0x%x, v%d" % (XA, XB, XA))
    a("v_and_b32 v%d, 3, v%d" % (T[5], t)); a("s_lshl_b32 s10, s3, 3"); a("v_add_u32 v%d, s10, v%d" % (T[5], T[5]))
    a("v_lshlrev_b32 v%d, 2, v%d" % (T[6], T[4])); a("v_xor_b32 v%d, v%d, v%d" % (T[5], T[5], T[6])); a("v_lshlrev_b32 v%d, 4, v%d" % (T[5], T[5]))
    a("v_lshl_add_u32 v%d, v%d, 3, v%d" % (T[6], g, T[4])); a("v_lshl_add_u32 v%d, v%d, 9, v%d" % (WA, T[6], T[5]))
    WA1 = T[9]
    a("v_xor_b32 v%d, 64, v%d" % (WA1, WA))
    a("v_lshlrev_b32 v%d, 9, v%d" % (T[5], g)); a("v_lshl_add_u32 v%d, v%d, 4, v%d" % (QO, t, T[5]))
    a("s_waitcnt lgkmcnt(0)")
    a("s_cmp_eq_u32 s4, 0")
    for d in (16, 22):
        a("s_cselect_b32 s%d, s%d, s%d" % (d, d, d+10)); a("s_cselect_b32 s%d, s%d, s%d" % (d+1, d+1, d+11))
    srd(a, sX, "s16", "s17", 16*144*640*2); srd(a, sWQ, "s22", "s23", 640*4096*2)
    a("s_add_u32 s40, s40, 0x%x" % Q_OFF); a("s_addc_u32 s41, s41, 0")
    srd(a, sQ, "s40", "s41", Q_BYTES)
    a("s_lshl_b32 s14, s3, 8")
    WAc, WA1c, XAc = T[6], T[7], T[8]
    def dma():
        a("s_lshl_b32 s16, s20, 18"); a("s_add_u32 s16, s16, s13"); a("s_lshl_b32 s17, s20, 6"); a("s_cmp_lt_u32 s20, 20")
        a("s_cselect_b32 s16, s16, 0x%x" % 0x7f000000); a("s_cselect_b32 s17, s17, 0x%x" % 0x7f000000)
        a("s_lshl_b32 s18, s21, 14"); a("s_add_u32 s18, s18, s9"); a("s_mul_i32 s19, s21, 9216"); a("s_add_u32 s19, s19, 0x%x" % XB)
        for i in range(4):
            a("s_add_u32 m0, s18, 0x%x" % (i*4096))
            a("s_add_u32 s10, s16, 0x%x" % (8*i*8192))
            a("buffer_load_dwordx4 v%d, s[%d:%d], s10 offen lds" % (DW, sWQ, sWQ+3))
        a("s_add_u32 s18, s19, s9")
        for i in range(2):
            a("s_add_u32 m0, s18, 0x%x" % (i*4096))
            a("s_add_u32 s10, s17, 0x%x" % (i*64*1280))
            a("buffer_load_dwordx4 v%d, s[%d:%d], s10 offen lds" % (DX, sX, sX+3))
        a("s_add_u32 s18, s19, s14"); a("s_add_u32 m0, s18, 8192")
        a("s_mov_b64 exec, 0xffff")
        a("buffer_load_dwordx4 v%d, s[%d:%d], s17 offen lds" % (DX8, sX, sX+3))
        a("s_mov_b64 exec, -1")
        a("s_add_u32 s20, s20, 1"); a("s_add_u32 s21, s21, 1"); a("s_cmp_eq_u32 s21, 3"); a("s_cselect_b32 s21, 0, s21")
    a("s_mov_b32 s20, 0"); a("s_mov_b32 s21, 0"); a("s_mov_b32 s22, 0")
    dma(); dma()
    for i in range(144): a("v_mov_b32 v%d, 0" % (ACC+i))
    a.label("L_k0_loop")
    a("s_lshl_b32 s23, s22, 14"); a("s_mul_i32 s24, s22, 9216")
    a("v_add_u32 v%d, s23, v%d" % (WAc, WA)); a("v_add_u32 v%d, s23, v%d" % (WA1c, WA1)); a("v_add_u32 v%d, s24, v%d" % (XAc, XA))
    a("s_add_u32 s22, s22, 1"); a("s_cmp_eq_u32 s22, 3"); a("s_cselect_b32 s22, 0, s22")
    a("s_waitcnt vmcnt(7)"); a("s_barrier")
    for f in range(4):
        for u in range(2):
            a("ds_read_b64_tr_b16 %s, v%d offset:%d" % (vr(AF+4*f+2*u, 2), WA1c if f >= 2 else WAc, u*2048 + 8*(f % 2)))
    for mt in range(4): a("ds_read_b128 %s, v%d offset:%d" % (vr(BF+4*mt, 4), XAc, mt*1024))
    dma()
    for mt in range(9):
        if mt + 4 < 9: a("ds_read_b128 %s, v%d offset:%d" % (vr(BF+4*(mt+4), 4), XAc, (mt+4)*1024))
        a("s_waitcnt lgkmcnt(%d)" % min(4, 8-mt))
        for f in range(4):
            d = vr(ACC + 16*mt + 4*f, 4)
            a("v_mfma_f32_16x16x32_bf16 %s, %s, %s, %s" % (d, vr(AF+4*f, 4), vr(BF+4*mt, 4), d))
    a("s_cmp_lt_u32 s20, 22"); a("s_cbranch_scc1 L_k0_loop")
    a("s_lshl_b32 s10, s4, 4"); a("s_add_u32 s10, s10, s5"); a("s_lshl_b32 s10, s10, 4"); a("s_add_u32 s10, s10, s6")
    a("s_lshl_b32 s10, s10, 1"); a("s_lshr_b32 s11, s3, 1"); a("s_add_u32 s10, s10, s11"); a("s_mul_i32 s10, s10, 36864")
    a("s_and_b32 s11, s3, 1"); a("s_lshl_b32 s12, s11, 12"); a("s_add_u32 s12, s12, s10")
    a("s_lshl_b32 s13, s11, 11"); a("s_add_u32 s13, s13, s10"); a("s_add_u32 s13, s13, 32768")
    a("s_nop 7")
    for mt in range(9):
        for tl in range(2):
            b = ACC + 16*mt + 8*tl
            for k in range(4): a("v_cvt_pk_bf16_f32 v%d, v%d, v%d" % (b+k, b+2*k, b+2*k+1))
            if mt < 8:
                if mt % 2 == 0 and tl == 0 and mt: a("s_add_u32 s12, s12, 8192")
                a("buffer_store_dwordx4 %s, v%d, s[%d:%d], s12 offen offset:%d" % (vr(b, 4), QO, sQ, sQ+3, tl*2048 + (mt % 2)*256))
            else:
                a("buffer_store_dwordx4 %s, v%d, s[%d:%d], s13 offen offset:%d" % (vr(b, 4), LN16, sQ, sQ+3, tl*1024))
    a.label("L_k0_end")
    a("s_endpgm")
    return a.L

OOB = 0x7f000000
def k1():
    a = Asm()
    ACC, AX, QF, QX, S, P = 0, 64, 96, 128, 144, 176
    BUF = [192 + 4*i for i in range(6)]
    SX, PX = 216, 220
    KA, VA = 222, 230
    KX, VX, OO, DK, DV, _a, _b, _c, M, Lr, MX, LX = range(234, 246)
    T = list(range(246, 256))
    LN16 = T[9]
    sQ, sK, sV, sWO, sO, sWT = 44, 48, 52, 60, 64, 68
    XR = 65536
    a("s_cmp_ge_u32 s2, 512"); a("s_cbranch_scc1 L_k1_end")
    a("s_load_dwordx16 s[16:31], s[0:1], 0"); a("s_load_dwordx8 s[32:39], s[0:1], 64")
    a("s_load_dwordx2 s[40:41], s[0:1], 96")
    a("v_lshrrev_b32 v%d, 6, v0" % T[0]); a("v_and_b32 v%d, 63, v0" % T[1])
    a("s_nop 0"); a("v_readfirstlane_b32 s3, v%d" % T[0])
    a("s_and_b32 s6, s2, 15"); a("s_lshr_b32 s9, s2, 4"); a("s_lshr_b32 s4, s9, 4"); a("s_and_b32 s5, s9, 15")
    a("s_lshl_b32 s7, s5, 4"); a("s_add_u32 s7, s7, s6"); a("s_lshl_b32 s7, s7, 18")
    a("s_mov_b32 s8, s7"); a("s_add_u32 s42, s7, 0x40000")
    a("s_mul_i32 s43, s2, 73728")
    a("s_lshl_b32 s9, s3, 10")
    a("s_mov_b32 s11, 0x%x" % f2u(C_SCALE)); a("s_mov_b32 s12, 0x%x" % f2u(8.0))
    l = T[1]; g, t = T[2], T[3]
    a("v_lshrrev_b32 v%d, 4, v%d" % (g, l)); a("v_and_b32 v%d, 15, v%d" % (t, l)); a("v_lshlrev_b32 v%d, 4, v%d" % (LN16, l))
    a("s_lshl_b32 s10, s3, 2"); a("v_add_u32 v%d, s10, v%d" % (T[4], g))
    a("v_xor_b32 v%d, v%d, v%d" % (T[5], t, T[4])); a("v_lshlrev_b32 v%d, 4, v%d" % (T[5], T[5]))
    a("v_lshl_add_u32 v%d, v%d, 8, v%d" % (DK, T[4], T[5]))
    a("v_lshlrev_b32 v%d, 2, v%d" % (T[5], g)); a("v_xor_b32 v%d, v%d, v%d" % (T[5], t, T[5]))
    a("v_lshlrev_b32 v%d, 4, v%d" % (T[5], T[5]))
    a("v_lshl_add_u32 v%d, v%d, 8, v%d" % (DV, T[4], T[5]))
    a("v_lshrrev_b32 v%d, 5, v%d" % (T[6], l))
    hh = T[6]
    a("s_movk_i32 s13, 0x2800"); a("v_mul_lo_u32 v%d, v%d, s13" % (T[4], g)); a("v_lshl_add_u32 v%d, v%d, 1, v%d" % (T[4], t, T[4]))
    a("s_waitcnt lgkmcnt(0)")
    a("s_cmp_eq_u32 s4, 0")
    for d in (18, 20, 24):
        a("s_cselect_b32 s%d, s%d, s%d" % (d, d, d+10)); a("s_cselect_b32 s%d, s%d, s%d" % (d+1, d+1, d+11))
    srd(a, sK, "s18", "s19", 1 << 26); srd(a, sV, "s20", "s21", 1 << 26); srd(a, sWO, "s24", "s25", 640*4096*2)
    srd(a, sO, "s40", "s41", O_BYTES)
    a("s_add_u32 s40, s40, 0x%x" % O_BYTES); a("s_addc_u32 s41, s41, 0")
    srd(a, sWT, "s40", "s41", WT_BYTES)
    a("s_add_u32 s40, s40, 0x%x" % WT_BYTES); a("s_addc_u32 s41, s41, 0")
    srd(a, sQ, "s40", "s41", Q_BYTES)
    def dma(slot):
        isv = slot % 2
        sr = 8 if isv else 7
        a("s_cmp_lt_u32 s%d, s42" % sr); a("s_cselect_b32 s10, s%d, 0x%x" % (sr, OOB))
        for i in range(4):
            a("s_add_u32 m0, s9, 0x%x" % (slot*16384 + i*4096))
            if i: a("s_add_u32 s10, s10, 4096")
            else: a("s_add_u32 s%d, s%d, 16384" % (sr, sr))
            a("buffer_load_dwordx4 v%d, s[%d:%d], s10 offen lds" % ((DV, sV, sV+3) if isv else (DK, sK, sK+3)))
    def qload():
        a("s_lshl_b32 s15, s3, 13"); a("s_add_u32 s15, s15, s43"); a("s_add_u32 s16, s15, 4096"); a("s_add_u32 s14, s43, 32768")
        for s_ in range(8): a("buffer_load_dwordx4 %s, v%d, s[%d:%d], s%d offen offset:%d" % (vr(QF+4*s_, 4), LN16, sQ, sQ+3, 15 + s_//4, (s_ % 4)*1024))
        for s_ in range(4): a("buffer_load_dwordx4 %s, v%d, s[%d:%d], s14 offen offset:%d" % (vr(QX+4*s_, 4), LN16, sQ, sQ+3, s_*1024))
    dma(0); qload()
    a("s_and_b32 s14, s5, 7"); a("s_lshl_b32 s15, s6, 3"); a("s_add_u32 s14, s14, s15")
    a("s_lshr_b32 s15, s5, 3"); a("s_lshl_b32 s15, s15, 2"); a("s_add_u32 s15, s15, s3")
    a("s_mul_i32 s17, s14, 40960"); a("s_mul_i32 s18, s15, 160"); a("s_add_u32 s17, s17, s18")
    a("s_add_u32 s18, s17, 2560"); a("s_add_u32 s19, s17, 5120"); a("s_add_u32 s20, s17, 7680")
    for fi in range(5):
        for j in range(8):
            a("buffer_load_ushort v%d, v%d, s[%d:%d], s%d offen offset:%d" % (8*fi+j, T[4], sWO, sWO+3, 17 + j//2, (j % 2)*1280 + fi*32))
    a("s_lshl_b32 s22, s4, 3"); a("s_add_u32 s17, s15, s22"); a("s_lshl_b32 s17, s17, 7"); a("s_add_u32 s17, s17, s14")
    a("s_mul_i32 s23, s17, 5120"); a("s_add_u32 s24, s23, 4096")
    dma(1); dma(2)
    a("v_and_b32 v%d, 31, v%d" % (T[4], l))
    a("v_and_b32 v%d, 19, v%d" % (T[5], T[4])); a("v_and_b32 v%d, 4, v%d" % (T[7], T[4])); a("v_lshl_add_u32 v%d, v%d, 1, v%d" % (T[5], T[7], T[5]))
    a("v_and_b32 v%d, 8, v%d" % (T[7], T[4])); a("v_lshrrev_b32 v%d, 1, v%d" % (T[7], T[7])); a("v_add_u32 v%d, v%d, v%d" % (T[5], T[5], T[7]))
    a("v_and_b32 v%d, 15, v%d" % (T[7], T[5])); a("v_xor_b32 v%d, v%d, v%d" % (T[7], T[7], hh)); a("v_lshlrev_b32 v%d, 4, v%d" % (T[7], T[7]))
    a("v_lshl_add_u32 v%d, v%d, 8, v%d" % (KA, T[5], T[7]))
    for s in range(1, 8): a("v_xor_b32 v%d, %d, v%d" % (KA+s, 32*s, KA))
    r_, c_ = T[4], T[5]
    a("v_lshrrev_b32 v%d, 2, v%d" % (r_, t)); a("v_and_b32 v%d, 3, v%d" % (c_, t))
    a("v_and_b32 v%d, 1, v%d" % (T[7], g)); a("v_and_b32 v%d, 1, v%d" % (T[8], c_)); a("v_lshl_add_u32 v%d, v%d, 1, v%d" % (T[7], T[7], T[8]))
    a("v_lshl_add_u32 v%d, v%d, 2, v%d" % (T[7], r_, T[7]))
    a("v_lshlrev_b32 v%d, 4, v%d" % (T[7], T[7])); a("v_lshrrev_b32 v%d, 1, v%d" % (T[8], c_)); a("v_lshl_add_u32 v%d, v%d, 3, v%d" % (T[7], T[8], T[7]))
    a("v_lshl_add_u32 v%d, v%d, 3, v%d" % (T[8], hh, r_)); a("v_lshl_add_u32 v%d, v%d, 8, v%d" % (VA, T[8], T[7]))
    for tt in range(1, 4): a("v_xor_b32 v%d, %d, v%d" % (VA+tt, 64*tt, VA))
    a("s_lshl_b32 s10, s3, 4"); a("v_add_u32 v%d, s10, v%d" % (T[7], t)); a("v_xor_b32 v%d, v%d, v%d" % (T[8], g, t))
    a("v_lshlrev_b32 v%d, 4, v%d" % (T[8], T[8])); a("v_lshl_add_u32 v%d, v%d, 8, v%d" % (KX, T[7], T[8]))
    a("v_lshl_add_u32 v%d, v%d, 2, v%d" % (T[7], g, r_)); a("v_add_u32 v%d, s10, v%d" % (T[7], T[7]))
    a("v_lshl_add_u32 v%d, v%d, 2, v%d" % (T[8], r_, c_)); a("v_lshlrev_b32 v%d, 4, v%d" % (T[8], T[8]))
    a("v_lshl_add_u32 v%d, v%d, 8, v%d" % (VX, T[7], T[8]))
    a("v_lshl_add_u32 v%d, v%d, 4, v%d" % (T[7], hh, t)); a("v_lshlrev_b32 v%d, 4, v%d" % (T[7], T[7]))
    a("v_and_b32 v%d, 1, v%d" % (T[8], g)); a("v_lshl_add_u32 v%d, v%d, 10, v%d" % (OO, T[8], T[7]))
    a("s_waitcnt vmcnt(8)")
    for fi in range(5):
        for k in range(4): a("v_lshl_or_b32 v%d, v%d, 16, v%d" % (8*fi+k, 8*fi+2*k+1, 8*fi+2*k))
        a("buffer_store_dwordx4 %s, v%d, s[%d:%d], s%d offen offset:%d" % (vr(8*fi, 4), LN16, sWT, sWT+3, 23 + fi//4, (fi % 4)*1024))
    a("s_mov_b32 s28, 0")
    a.label("L_k1_head")
    a("s_nop 1")
    for i in range(96): a("v_mov_b32 v%d, 0" % i)
    a("v_mov_b32 v%d, 0x%x" % (M, f2u(-1e30))); a("v_mov_b32 v%d, 0x%x" % (MX, f2u(-1e30)))
    a("v_mov_b32 v%d, 0" % Lr); a("v_mov_b32 v%d, 0" % LX)
    a("s_mov_b32 s27, 0")
    a.label("L_k1_blk")
    def trjob(T_, ks, slot, mf):
        def rd(b): return ["ds_read_b64_tr_b16 %s, v%d offset:%d" % (vr(b+2*u, 2), VA+T_, slot*16384 + ks*4096 + u*1024) for u in range(2)]
        return (rd, mf)
    for slot in range(4):
        a("s_waitcnt vmcnt(8)"); a("s_barrier")
        dma((slot + 3) % 4)
        if slot % 2 == 0:
            for s in range(1, 4): a("v_xor_b32 v%d, %d, v%d" % (T[s], 64*s, KX))
            jobs = []
            for kt in range(2):
                for s in range(8):
                    c = "0" if s == 0 else vr(S+16*kt, 16)
                    jobs.append((lambda b, kt=kt, s=s: ["ds_read_b128 %s, v%d offset:%d" % (vr(b, 4), KA+s, slot*16384 + kt*8192)],
                                 lambda b, kt=kt, s=s, c=c: ["v_mfma_f32_32x32x16_bf16 %s, %s, %s, %s" % (vr(S+16*kt, 16), vr(b, 4), vr(QF+4*s, 4), c)]))
            for s in range(4):
                c = "0" if s == 0 else vr(SX, 4)
                jobs.append((lambda b, s=s: ["ds_read_b128 %s, v%d offset:%d" % (vr(b, 4), KX if s == 0 else T[s], slot*16384)],
                             lambda b, s=s, c=c: ["v_mfma_f32_16x16x32_bf16 %s, %s, %s, %s" % (vr(SX, 4), vr(b, 4), vr(QX+4*s, 4), c)]))
            frag_pipe(a, jobs, BUF, 4)
            a("s_nop 3")
            a("v_max3_f32 v%d, v%d, v%d, v%d" % (T[0], S, S+1, S+2)); a("v_max3_f32 v%d, v%d, v%d, v%d" % (T[1], S+16, S+17, S+18))
            for i in range(3, 15, 2):
                a("v_max3_f32 v%d, v%d, v%d, v%d" % (T[0], T[0], S+i, S+i+1)); a("v_max3_f32 v%d, v%d, v%d, v%d" % (T[1], T[1], S+16+i, S+17+i))
            a("v_max3_f32 v%d, v%d, v%d, v%d" % (T[0], T[0], S+15, S+31)); a("v_max_f32 v%d, v%d, v%d" % (T[0], T[0], T[1]))
            a("v_max3_f32 v%d, v%d, v%d, v%d" % (T[2], SX, SX+1, SX+2)); a("v_max_f32 v%d, v%d, v%d" % (T[2], T[2], SX+3))
            a("v_mov_b32 v%d, v%d" % (T[1], T[0])); a("v_mov_b32 v%d, v%d" % (T[3], T[2])); a("s_nop 1")
            a("v_permlane32_swap_b32 v%d, v%d" % (T[0], T[1])); a("v_permlane32_swap_b32 v%d, v%d" % (T[2], T[3])); a("s_nop 1")
            a("v_max_f32 v%d, v%d, v%d" % (T[0], T[0], T[1])); a("v_max_f32 v%d, v%d, v%d" % (T[2], T[2], T[3]))
            a("v_mov_b32 v%d, v%d" % (T[3], T[2])); a("v_mul_f32 v%d, s11, v%d" % (T[0], T[0])); a("s_nop 1")
            a("v_permlane16_swap_b32 v%d, v%d" % (T[2], T[3])); a("s_nop 1")
            a("v_max_f32 v%d, v%d, v%d" % (T[2], T[2], T[3])); a("v_mul_f32 v%d, s11, v%d" % (T[2], T[2]))
            for (mm, ll, tn, acc, n) in ((M, Lr, T[0], ACC, 64), (MX, LX, T[2], AX, 32)):
                lb = a.newlab("nors")
                a("v_add_f32 v%d, s12, v%d" % (T[4], mm)); a("v_cmp_gt_f32 vcc, v%d, v%d" % (tn, T[4])); a("s_nop 1")
                a("s_cbranch_vccz %s" % lb)
                a("v_max_f32 v%d, v%d, v%d" % (T[4], mm, tn)); a("v_sub_f32 v%d, v%d, v%d" % (T[5], mm, T[4]))
                a("v_exp_f32 v%d, v%d" % (T[5], T[5])); a("v_mov_b32 v%d, v%d" % (mm, T[4]))
                a("v_mul_f32 v%d, v%d, v%d" % (ll, ll, T[5]))
                for i in range(n): a("v_mul_f32 v%d, v%d, v%d" % (acc+i, acc+i, T[5]))
                a.label(lb)
            for i in range(32): a("v_fma_f32 v%d, v%d, s11, -v%d" % (S+i, S+i, M))
            for i in range(4): a("v_fma_f32 v%d, v%d, s11, -v%d" % (SX+i, SX+i, MX))
            for i in range(32): a("v_exp_f32 v%d, v%d" % (S+i, S+i))
            for i in range(4): a("v_exp_f32 v%d, v%d" % (SX+i, SX+i))
            a("v_add_f32 v%d, v%d, v%d" % (T[0], S, S+1)); a("v_add_f32 v%d, v%d, v%d" % (T[1], S+2, S+3))
            for i in range(4, 32, 2):
                a("v_add_f32 v%d, v%d, v%d" % (T[0], T[0], S+i)); a("v_add_f32 v%d, v%d, v%d" % (T[1], T[1], S+i+1))
            for i in range(16): a("v_cvt_pk_bf16_f32 v%d, v%d, v%d" % (P+i, S+2*i, S+2*i+1))
            a("v_add_f32 v%d, v%d, v%d" % (T[2], SX, SX+1)); a("v_add_f32 v%d, v%d, v%d" % (T[3], SX+2, SX+3))
            a("v_cvt_pk_bf16_f32 v%d, v%d, v%d" % (PX, SX, SX+1)); a("v_cvt_pk_bf16_f32 v%d, v%d, v%d" % (PX+1, SX+2, SX+3))
            a("v_add_f32 v%d, v%d, v%d" % (T[0], T[0], T[1])); a("v_add_f32 v%d, v%d, v%d" % (T[2], T[2], T[3]))
            a("v_add_f32 v%d, v%d, v%d" % (Lr, Lr, T[0])); a("v_add_f32 v%d, v%d, v%d" % (LX, LX, T[2]))
        else:
            for s in range(1, 4): a("v_xor_b32 v%d, %d, v%d" % (T[s], 64*s, VX))
            jobs = []
            for ks in range(4):
                for T_ in range(4):
                    c = vr(ACC+16*T_, 16)
                    jobs.append(trjob(T_, ks, slot, lambda b, T_=T_, ks=ks, c=c: ["v_mfma_f32_32x32x16_bf16 %s, %s, %s, %s" % (c, vr(b, 4), vr(P+4*ks, 4), c)]))
                T_ = ks
                def rdx(b, T_=T_): return ["ds_read_b64_tr_b16 %s, v%d offset:%d" % (vr(b+2*e, 2), VX if T_ == 0 else T[T_], slot*16384 + 8*e) for e in range(2)]
                def mfx(b, T_=T_): return ["v_mfma_f32_16x16x16_bf16 %s, %s, %s, %s" % (vr(AX+8*T_+4*e, 4), vr(b+2*e, 2), vr(PX, 2), vr(AX+8*T_+4*e, 4)) for e in range(2)]
                jobs.append((rdx, mfx))
            frag_pipe(a, jobs, BUF, 4)
    a("s_add_u32 s27, s27, 1"); a("s_cmp_lt_u32 s27, 4"); a("s_cbranch_scc1 L_k1_blk")
    a("s_mov_b32 s29, s43")
    a("s_add_u32 s43, s43, 36864"); a("s_cmp_eq_u32 s28, 0"); a("s_cselect_b32 s43, s43, 0x%x" % OOB)
    qload()
    a("v_mov_b32 v%d, v%d" % (T[0], Lr)); a("v_mov_b32 v%d, v%d" % (T[1], LX)); a("s_nop 1")
    a("v_permlane32_swap_b32 v%d, v%d" % (Lr, T[0])); a("v_permlane32_swap_b32 v%d, v%d" % (LX, T[1])); a("s_nop 1")
    a("v_add_f32 v%d, v%d, v%d" % (Lr, Lr, T[0])); a("v_add_f32 v%d, v%d, v%d" % (LX, LX, T[1]))
    a("v_mov_b32 v%d, v%d" % (T[1], LX)); a("v_rcp_f32 v%d, v%d" % (Lr, Lr)); a("s_nop 1")
    a("v_permlane16_swap_b32 v%d, v%d" % (LX, T[1])); a("s_nop 1")
    a("v_add_f32 v%d, v%d, v%d" % (LX, LX, T[1]))
    assert MX % 2 == 0 and LX == MX + 1
    a("v_lshrrev_b32 v%d, 1, v%d" % (T[2], LN16)); a("v_add_u32 v%d, 0x%x, v%d" % (T[2], XR, T[2]))
    a("s_lshl_b32 s10, s3, 9"); a("v_add_u32 v%d, s10, v%d" % (T[1], T[2]))
    a("ds_write_b64 v%d, %s" % (T[1], vr(MX, 2)))
    a("s_lshl_b32 s15, s3, 11"); a("s_add_u32 s15, s15, s29")
    for i in range(64): a("v_mul_f32 v%d, v%d, v%d" % (ACC+i, ACC+i, Lr))
    for i in range(32): a("v_cvt_pk_bf16_f32 v%d, v%d, v%d" % (S+i, ACC+2*i, ACC+2*i+1))
    for T_ in range(4):
        if T_: a("s_add_u32 s15, s15, 9216")
        for pc in range(2):
            a("buffer_store_dwordx4 %s, v%d, s[%d:%d], s15 offen offset:%d" % (vr(S+8*T_+4*pc, 4), OO, sO, sO+3, pc*512))
    a("s_waitcnt lgkmcnt(0)"); a("s_barrier")
    B0 = BUF[0]
    for p in range(4): a("ds_read_b64 %s, v%d offset:%d" % (vr(B0+2*p, 2), T[2], p*512))
    a("s_waitcnt lgkmcnt(0)"); a("s_barrier")
    a("v_max3_f32 v%d, v%d, v%d, v%d" % (T[1], B0, B0+2, B0+4)); a("v_max_f32 v%d, v%d, v%d" % (T[1], T[1], B0+6))
    for p in range(4): a("v_sub_f32 v%d, v%d, v%d" % (B0+2*p, B0+2*p, T[1]))
    a("v_sub_f32 v%d, v%d, v%d" % (T[3], MX, T[1]))
    for p in range(4): a("v_exp_f32 v%d, v%d" % (B0+2*p, B0+2*p))
    a("v_exp_f32 v%d, v%d" % (T[3], T[3]))
    a("v_mul_f32 v%d, v%d, v%d" % (T[1], B0, B0+1))
    for p in range(1, 4): a("v_fmac_f32 v%d, v%d, v%d" % (T[1], B0+2*p, B0+2*p+1))
    a("v_rcp_f32 v%d, v%d" % (T[1], T[1])); a("s_nop 0")
    a("v_mul_f32 v%d, v%d, v%d" % (T[3], T[3], T[1]))
    for i in range(32): a("v_mul_f32 v%d, v%d, v%d" % (AX+i, AX+i, T[3]))
    a("s_lshl_b32 s10, s3, 13"); a("s_add_u32 s10, s10, 49152"); a("v_add_u32 v%d, s10, v%d" % (T[0], LN16))
    for i in range(8): a("ds_write_b128 v%d, %s offset:%d" % (T[0], vr(AX+4*i, 4), i*1024))
    a("s_lshl_b32 s10, s3, 11"); a("s_add_u32 s10, s10, 49152"); a("v_add_u32 v%d, s10, v%d" % (T[0], LN16))
    a("s_waitcnt lgkmcnt(0)"); a("s_barrier")
    for p in range(4):
        for e in range(2): a("ds_read_b128 %s, v%d offset:%d" % (vr(AX+8*p+4*e, 4), T[0], p*8192 + e*1024))
    a("s_waitcnt lgkmcnt(0)")
    for i in range(8):
        a("v_add_f32 v%d, v%d, v%d" % (AX+i, AX+i, AX+8+i)); a("v_add_f32 v%d, v%d, v%d" % (AX+16+i, AX+16+i, AX+24+i))
    for i in range(8): a("v_add_f32 v%d, v%d, v%d" % (AX+i, AX+i, AX+16+i))
    for i in range(4): a("v_cvt_pk_bf16_f32 v%d, v%d, v%d" % (P+i, AX+2*i, AX+2*i+1))
    a("s_mul_i32 s15, s3, 9216"); a("s_add_u32 s15, s15, s29"); a("s_add_u32 s15, s15, 8192")
    a("buffer_store_dwordx4 %s, v%d, s[%d:%d], s15 offen" % (vr(P, 4), LN16, sO, sO+3))
    a("s_add_u32 s28, s28, 1"); a("s_cmp_lt_u32 s28, 2"); a("s_cbranch_scc0 L_k1_end")
    a("s_waitcnt vmcnt(9)")
    a("s_branch L_k1_head")
    a.label("L_k1_end")
    a("s_endpgm")
    return a.L

def k2():
    a = Asm()
    sO, sWT, sOUT = 44, 48, 52
    NST = 4
    a("s_cmp_ge_u32 s2, 256"); a("s_cbranch_scc1 L_k2_end")
    a("s_load_dwordx2 s[36:37], s[0:1], 80"); a("s_load_dwordx2 s[40:41], s[0:1], 96")
    a("v_lshrrev_b32 v1, 6, v0"); a("v_and_b32 v2, 63, v0"); a("s_nop 0"); a("v_readfirstlane_b32 s3, v1")
    a("s_and_b32 s8, s2, 7"); a("s_lshr_b32 s9, s2, 3")
    a("s_lshr_b32 s4, s8, 2"); a("s_and_b32 s5, s8, 3"); a("s_lshl_b32 s5, s5, 2"); a("s_lshr_b32 s10, s9, 3"); a("s_add_u32 s5, s5, s10")
    a("s_and_b32 s6, s9, 7")
    a("v_lshlrev_b32 v3, 4, v2")
    a("s_lshl_b32 s10, s4, 4"); a("s_add_u32 s10, s10, s5"); a("s_lshl_b32 s10, s10, 2"); a("s_add_u32 s10, s10, s3"); a("s_mul_i32 s10, s10, %d" % (32*9216))
    a("v_add_u32 v4, s10, v3")
    a("s_lshl_b32 s10, s4, 3"); a("s_add_u32 s10, s10, s6"); a("s_lshl_b32 s10, s10, 2"); a("s_add_u32 s10, s10, s3"); a("s_mul_i32 s10, s10, %d" % (32*5120))
    a("v_add_u32 v5, s10, v3")
    a("s_mov_b32 s22, 0")
    a("s_waitcnt lgkmcnt(0)")
    srd(a, sO, "s40", "s41", O_BYTES)
    a("s_add_u32 s40, s40, 0x%x" % O_BYTES); a("s_addc_u32 s41, s41, 0")
    srd(a, sWT, "s40", "s41", WT_BYTES)
    srd(a, sOUT, "s36", "s37", 16*144*1280*2)
    def load(st):
        b = 8 + 56*st
        a("s_mul_i32 s16, s22, 5120"); a("s_mul_i32 s18, s22, 9216"); a("s_cmp_lt_u32 s22, 32")
        a("s_cselect_b32 s16, s16, 0x%x" % OOB); a("s_cselect_b32 s18, s18, 0x%x" % OOB)
        a("s_add_u32 s17, s16, 4096"); a("s_add_u32 s19, s18, 4096"); a("s_add_u32 s20, s18, 8192"); a("s_add_u32 s22, s22, 1")
        for i in range(5):
            a("buffer_load_dwordx4 %s, v5, s[%d:%d], s%d offen offset:%d" % (vr(b+4*i, 4), sWT, sWT+3, 16+i//4, (i % 4)*1024))
        for i in range(9):
            a("buffer_load_dwordx4 %s, v4, s[%d:%d], s%d offen offset:%d" % (vr(b+20+4*i, 4), sO, sO+3, 18+i//4, (i % 4)*1024))
    for st in range(NST-1): load(st)
    for i in range(180): a("v_accvgpr_write_b32 a%d, 0" % i)
    a.label("L_k2_loop")
    for st in range(NST):
        load((st + NST - 1) % NST)
        a("s_waitcnt vmcnt(%d)" % (14*(NST-1)))
        b = 8 + 56*st
        for mt in range(9):
            for nt in range(5):
                i = nt*9 + mt
                a("v_mfma_f32_16x16x32_bf16 %s, %s, %s, %s" % (ar(4*i, 4), vr(b+4*nt, 4), vr(b+20+4*mt, 4), ar(4*i, 4)))
    a("s_cmp_lt_u32 s22, %d" % (32 + NST - 1)); a("s_cbranch_scc1 L_k2_loop")
    a("s_waitcnt vmcnt(0)")
    a("s_mul_i32 s10, s3, 24576"); a("v_add_u32 v4, s10, v3")
    a("s_mul_i32 s10, s3, 6144"); a("v_add_u32 v5, s10, v3"); a("v_add_u32 v6, 49152, v5")
    a("s_mul_i32 s10, s5, 144"); a("v_and_b32 v7, 15, v2"); a("v_add_u32 v7, s10, v7"); a("s_movk_i32 s11, 2560"); a("v_mul_lo_u32 v7, v7, s11")
    a("v_lshrrev_b32 v1, 4, v2"); a("v_lshl_add_u32 v7, v1, 3, v7")
    a("s_mul_i32 s10, s4, 1280"); a("s_mul_i32 s11, s6, 160"); a("s_add_u32 s10, s10, s11"); a("v_add_u32 v7, s10, v7")
    a("s_mul_i32 s12, s3, 6")
    a("s_nop 7")
    for ph in range(2):
        tiles = range(24) if ph == 0 else range(24, 45)
        if ph: a("s_barrier")
        for i in tiles: a("ds_write_b128 v4, %s offset:%d" % (ar(4*i, 4), (i % 24)*1024))
        a("s_waitcnt lgkmcnt(0)"); a("s_barrier")
        for k in range(6):
            for p in range(4):
                a("ds_read_b128 %s, v%d offset:%d" % (vr(8+16*k+4*p, 4), 5 if p < 2 else 6, (p % 2)*24576 + k*1024))
            if k % 3 == 2: a("s_waitcnt lgkmcnt(0)")
        for k in range(6):
            b = 8+16*k
            for i in range(4):
                a("v_add_f32 v%d, v%d, v%d" % (b+i, b+i, b+4+i)); a("v_add_f32 v%d, v%d, v%d" % (b+8+i, b+8+i, b+12+i))
            for i in range(4): a("v_add_f32 v%d, v%d, v%d" % (b+i, b+i, b+8+i))
            a("v_cvt_pk_bf16_f32 v%d, v%d, v%d" % (b+4, b, b+1)); a("v_cvt_pk_bf16_f32 v%d, v%d, v%d" % (b+5, b+2, b+3))
            a("s_add_u32 s13, s12, %d" % (24*ph + k))
            a("s_mul_i32 s14, s13, 57"); a("s_lshr_b32 s14, s14, 9")
            a("s_mul_i32 s15, s14, 9"); a("s_sub_u32 s15, s13, s15")
            a("s_mul_i32 s15, s15, 40960"); a("s_lshl_b32 s14, s14, 5"); a("s_add_u32 s14, s14, s15")
            a("s_cmp_lt_u32 s13, 45"); a("s_cselect_b32 s14, s14, 0x40000000")
            a("buffer_store_dwordx2 %s, v7, s[%d:%d], s14 offen" % (vr(b+4, 2), sOUT, sOUT+3))
    a.label("L_k2_end")
    a("s_endpgm")
    return a.L

def desc(name, nv, acc, ns=102):
    return """.p2align 6
.amdhsa_kernel %s
  .amdhsa_next_free_vgpr %d
  .amdhsa_next_free_sgpr %d
  .amdhsa_accum_offset %d
  .amdhsa_group_segment_fixed_size 0
  .amdhsa_kernarg_size 104
  .amdhsa_user_sgpr_count 2
  .amdhsa_user_sgpr_kernarg_segment_ptr 1
  .amdhsa_system_sgpr_workgroup_id_x 1
.end_amdhsa_kernel
""" % (name, nv, ns, acc)

def main(out):
    K1 = NAME + "_kernel"; K2 = "oproj_kernel"
    o = []
    o.append("; @launch kernel=qproj_kernel grid=(512,1,1) block=(256,1,1) lds=76800")
    o.append("; @launch kernel=%s grid=(512,1,1) block=(256,1,1) lds=81920" % K1)
    o.append("; @launch kernel=%s grid=(256,1,1) block=(256,1,1) lds=98304" % K2)
    o.append('.amdgcn_target "amdgcn-amd-amdhsa--gfx950"'); o.append(".text")
    for nm, body in ((K1, k1()), (K2, k2()), ("qproj_kernel", k0())):
        o.append(".globl %s" % nm); o.append(".p2align 8"); o.append(".type %s,@function" % nm); o.append(nm + ":")
        o += body
    o.append('.section .rodata,"a"')
    o.append(desc(K1, 256, 256, 102 if PROF else 80)); o.append(desc(K2, 436, 256, 80)); o.append(desc("qproj_kernel", 216, 216, 80))
    open(out, "w").write("\n".join(o) + "\n")

if __name__ == "__main__":
    main(sys.argv[1] if len(sys.argv) > 1 else "cdna_kernels/%s.s" % NAME)
```
